```python
import torch

def _softmax(x, axis=-1):
    return torch.softmax(x, dim=axis)
def _gelu(x):
    return torch.nn.functional.gelu(x, approximate="tanh")
def _silu(x):
    return torch.nn.functional.silu(x)
def _sigmoid(x):
    return torch.sigmoid(x)
def _layernorm(x, axis=-1, eps=1e-5):
    m = x.mean(dim=axis, keepdim=True)
    v = x.var(dim=axis, keepdim=True, unbiased=False)
    return (x - m) / torch.sqrt(v + eps)
def _scatter_add(tgt, idx, src, axis=0):
    return tgt.clone().index_add_(axis, idx, src)
def _segment_sum(src, seg, n):
    out = torch.zeros((n,) + src.shape[1:], dtype=src.dtype)
    return out.index_add_(0, seg, src)
def _pad(x, pw):
    flat = tuple(v for pair in reversed(pw) for v in pair)
    return torch.nn.functional.pad(x, flat)

kernel_name = 'concat_heads__sliding_block__ssm_conv_h3__prompt'

def setup_inputs():

    _w = (lambda a: (lambda t: t.to(torch.bfloat16) if t.is_floating_point() else t)(torch.as_tensor(a)))
    def _A_setup():
        B, S, D = 1, 2048, 640
        return {
            "x": _w((lambda *s: torch.randn(*s, dtype=torch.bfloat16) * 0.2)(B, S, D)),
            "wqkv": _w((lambda *s: torch.randn(*s, dtype=torch.bfloat16) * 0.2)(D, 3 * D)),
            "wo": _w((lambda *s: torch.randn(*s, dtype=torch.bfloat16) * 0.05)(D, D)),
        }
    _A_in = _A_setup()

    def _B_setup():
        B, S, D = 1, 2048, 640
        ks = 4
        return {
            "q": _w((lambda *s: torch.randn(*s, dtype=torch.bfloat16) * 0.05)(B, S, D)),
            "k": _w((lambda *s: torch.randn(*s, dtype=torch.bfloat16) * 0.8)(B, S, D)),
            "v": _w((lambda *s: torch.randn(*s, dtype=torch.bfloat16) * 0.8)(B, S, D)),
            "shift_k": _w((lambda *s: torch.randn(*s, dtype=torch.bfloat16) * 0.8)(D, ks) * 0.5),
            "ssm_k": _w((lambda *s: torch.randn(*s, dtype=torch.bfloat16) * 3.2)(D, S) * (1.0 / S ** 0.5)),
            "ssm_D": _w((lambda *s: torch.randn(*s, dtype=torch.bfloat16) * 0.8)(D)),
        }
    _B_in = _B_setup()

    return {
        "A_x": _A_in["x"],
        "A_wqkv": _A_in["wqkv"],
        "A_wo": _A_in["wo"],
        "B_q": _B_in["q"],
        "B_k": _B_in["k"],
        "B_v": _B_in["v"],
        "B_shift_k": _B_in["shift_k"],
        "B_ssm_k": _B_in["ssm_k"],
        "B_ssm_D": _B_in["ssm_D"],
    }

def reference(A_x, A_wqkv, A_wo, B_q, B_k, B_v, B_shift_k, B_ssm_k, B_ssm_D):
    def _A_ref(x, wqkv, wo):
        B, S, D = x.shape
        H = 32; Dh = D // H; W = 256
        qkv = (lambda x, *d: x.permute(*d))((x @ wqkv).reshape(B, S, 3, H, Dh), 2, 0, 3, 1, 4)
        q, k, v = qkv[0], qkv[1], qkv[2]
        scores = torch.einsum("bhqd,bhkd->bhqk", q, k) * (Dh ** -0.5)
        idx = torch.arange(S)
        mask = (idx[:, None] - idx[None, :] >= 0) & (idx[:, None] - idx[None, :] < W)
        scores = torch.where(mask[None, None], scores, -1e9)
        p = _softmax(scores, axis=-1)
        o = torch.einsum("bhqk,bhkd->bhqd", p, v)
        return (lambda x, *d: x.permute(*d))(o, 0, 2, 1, 3).reshape(B, S, D) @ wo

    def _B_ref(q, k, v, shift_k, ssm_k, ssm_D):
        B, S, D = q.shape
        ks = shift_k.shape[-1]
        k_pad = _pad(k, ((0, 0), (ks - 1, 0), (0, 0)))
        k_shift = torch.zeros_like(k)
        for t in range(ks):
            k_shift = k_shift + k_pad[:, t:t + S, :] * shift_k[:, ks - 1 - t][None, None, :]
        kv = k_shift * v
        L = 2 * S
        kv_pad = _pad(kv, ((0, 0), (0, S), (0, 0)))
        kf_pad = _pad(ssm_k, ((0, 0), (0, S)))
        kv_f = (lambda x, axes=(-2,-1): torch.fft.rfft2(x.float(), dim=axes))(kv_pad[:, None, :, :], axes=(1, 2))
        kf_f = (lambda x, axes=(-2,-1): torch.fft.rfft2(x.float(), dim=axes))(kf_pad[:, None, :], axes=(1, 2))
        kf_f = (lambda x, *d: x.permute(*d))(kf_f, 1, 2, 0)
        y_f = kv_f * kf_f[None, :, :, :]
        y = (lambda x, s, axes=(-2,-1): torch.fft.irfft2(x, s=s, dim=axes).to(torch.bfloat16))(y_f, (1, L), axes=(1, 2))[:, 0, :S, :]
        y = y + kv * ssm_D[None, None, :]
        return q * y

    a = _A_ref(A_x, A_wqkv, A_wo)
    b = _B_ref(B_q, B_k, B_v, B_shift_k, B_ssm_k, B_ssm_D)
    return torch.concatenate([a, b], axis=-1)
```

```python
import re

class Asm:
    def __init__(self):
        self.lines = []
        self.uid = 0
    def __call__(self, s):
        for l in s.split('\n'):
            l = l.strip()
            if l:
                self.lines.append(l)
    def label(self, name):
        self.lines.append(name + ':')
    def newlabel(self, base):
        self.uid += 1
        return f".L{base}_{self.uid}"
    def c(self, s):
        self.lines.append('; ' + s)

def v(a, n=1):
    return f"v{a}" if n == 1 else f"v[{a}:{a+n-1}]"
def s(a, n=1):
    return f"s{a}" if n == 1 else f"s[{a}:{a+n-1}]"

class Cnt:
    def __init__(self, A, name, maxv):
        self.A, self.name, self.maxv = A, name, maxv
        self.ops = []
    def issue(self, tag):
        self.ops.append(tag)
    def n_after(self, tag):
        idx = max(i for i, t in enumerate(self.ops) if t == tag)
        return len(self.ops) - 1 - idx
    def wait(self, tag):
        if tag not in self.ops:
            return
        n = self.n_after(tag)
        if n > self.maxv:
            n = self.maxv
        self.A(f"s_waitcnt {self.name}({n})")
        self.ops = self.ops[len(self.ops) - n:] if n else []
    def wait_all(self):
        self.A(f"s_waitcnt {self.name}(0)")
        self.ops = []
    def reset(self):
        self.ops = []

_reg = re.compile(r'\b([vsa])(\d+)\b|\b([vsa])\[(\d+):(\d+)\]')
def regs_of(op):
    out = set()
    op = op.strip()
    for m in _reg.finditer(op):
        if m.group(1):
            out.add((m.group(1), int(m.group(2))))
        else:
            for r in range(int(m.group(4)), int(m.group(5)) + 1):
                out.add((m.group(3), r))
    if re.search(r'\bvcc\b', op): out |= {('s', 'vcc')}
    if re.search(r'\bexec\b', op): out |= {('s', 'exec')}
    if re.search(r'\bm0\b', op): out |= {('s', 'm0')}
    return out

TRANS = ('v_exp_f32', 'v_log_f32', 'v_rcp_f32', 'v_rsq_f32', 'v_sqrt_f32', 'v_sin_f32', 'v_cos_f32', 'v_rcp_iflag_f32')

class Ins:
    def __init__(self, line):
        self.line = line
        t = line.split(';')[0].strip()
        parts = t.split(None, 1)
        self.mn = parts[0]
        rest = parts[1] if len(parts) > 1 else ''
        ops, cur, d = [], '', 0
        for ch in rest:
            if ch in '[(': d += 1
            if ch in '])': d -= 1
            if ch == ',' and d == 0:
                ops.append(cur.strip()); cur = ''
            else:
                cur += ch
        if cur.strip(): ops.append(cur.strip())
        self.ops = ops
        mn = self.mn
        self.is_mfma = mn.startswith('v_mfma')
        self.is_valu = mn.startswith('v_') and not self.is_mfma
        self.is_trans = any(mn.startswith(x) for x in TRANS)
        self.is_vmem = mn.startswith(('buffer_', 'global_', 'flat_'))
        self.is_ds = mn.startswith('ds_')
        self.is_salu = mn.startswith('s_')
        self.is_lds_dma = self.is_vmem and (' lds' in (' ' + rest) or 'load_lds' in mn)
        self.passes = 0
        if self.is_mfma:
            self.passes = 8 if '32x32' in mn else 4
        w, r = set(), set()
        R = [regs_of(o) for o in ops]
        allr = set().union(*R) if R else set()
        if self.is_mfma:
            w = R[0]; self.srcA, self.srcB, self.srcC = R[1], R[2], R[3]
            r = R[1] | R[2] | R[3]
        elif mn.startswith('v_permlane') and 'swap' in mn:
            w = R[0] | R[1]; r = R[0] | R[1]
        elif mn.startswith('v_cmp'):
            w = R[0]; r = set().union(*R[1:])
            if mn.startswith('v_cmpx'): w |= {('s', 'exec')}
        elif self.is_valu:
            w = set(R[0]); r = set().union(*R[1:]) if len(R) > 1 else set()
            if mn.startswith(('v_fmac', 'v_pk_fmac', 'v_dot2c', 'v_writelane')): r |= R[0]
            if '_co_' in mn: w |= R[1]
        elif self.is_vmem:
            if 'store' in mn or 'atomic' in mn or self.is_lds_dma:
                r = allr
                if self.is_lds_dma: r = r | {('s', 'm0')}
            else:
                w = R[0]; r = set().union(*R[1:])
        elif self.is_ds:
            if mn.startswith(('ds_read', 'ds_bpermute', 'ds_permute', 'ds_swizzle')) or '_rtn' in mn:
                w = R[0]; r = set().union(*R[1:])
            else:
                r = allr
        elif self.is_salu:
            if mn.startswith(('s_cmp', 's_cbranch', 's_branch', 's_waitcnt', 's_barrier', 's_nop', 's_endpgm', 's_setprio', 's_sleep', 's_setpc', 's_bitcmp')):
                r = allr
            else:
                w = R[0] if R else set(); r = set().union(*R[1:]) if len(R) > 1 else set()
                if 'saveexec' in mn: w = w | {('s', 'exec')}
        self.w, self.r = w, r
        self.store_data = set()
        if self.is_vmem and 'store' in mn and ('x3' in mn or 'x4' in mn):
            self.store_data = R[0] if mn.startswith('buffer_') else R[1]
        self.states = 1
        if mn == 's_nop': self.states = int(ops[0], 0) + 1

def vonly(S): return {x for x in S if x[0] in 'va'}
def sonly(S): return {x for x in S if x[0] == 's'}

def need(p, c):
    n = 0
    if p.is_valu:
        pv, ps = vonly(p.w), sonly(p.w)
        if c.is_mfma and pv & c.r: n = max(n, 2)
        if c.mn.startswith('v_permlane') and pv & c.r: n = max(n, 2)
        if c.mn.startswith(('v_readfirstlane', 'v_readlane')) and pv & c.r: n = max(n, 1)
        if 'dpp' in c.line and c.is_valu and pv & c.r: n = max(n, 2)
        if p.is_trans and (c.is_valu and not c.is_trans or c.is_mfma) and pv & c.r: n = max(n, 1)
        if p.is_trans and (c.is_vmem or c.is_ds) and pv & c.r: n = max(n, 1)
        if ps:
            if c.is_vmem and ps & c.r: n = max(n, 5)
            if c.is_valu and ps & c.r: n = max(n, 2)
            if c.mn.startswith(('v_readlane', 'v_writelane')) and ps & c.r: n = max(n, 4)
            if c.is_salu and ps & c.r: n = max(n, 1)
            if ('s', 'exec') in ps and (c.is_mfma or c.mn.startswith(('v_permlane', 'v_readfirstlane', 'v_readlane'))): n = max(n, 4)
            if ('s', 'vcc') in ps and c.mn.startswith('s_cbranch_vcc'): n = max(n, 1)
    if p.is_salu and ('s', 'm0') in p.w and c.is_lds_dma: n = max(n, 1)
    if p.store_data and (c.is_valu or c.is_mfma or c.is_ds or c.is_vmem) and p.store_data & c.w: n = max(n, 2)
    if p.is_mfma:
        big = 12 if p.passes == 8 else 8
        if c.is_mfma:
            if p.w & (c.srcA | c.srcB): n = max(n, big)
            if p.w & c.srcC and not (p.w == c.srcC and p.passes == c.passes): n = max(n, big - 2)
            if p.w & c.w and not (p.w == c.srcC and p.passes == c.passes): n = max(n, big - 2)
        elif c.is_valu or c.is_vmem or c.is_ds:
            if p.w & (c.r | c.w): n = max(n, big)
            if c.is_valu and p.srcC & c.w: n = max(n, 7 if p.passes == 8 else 3)
    return n

def fix_hazards(lines, verbose=False):
    out, hist = [], []
    ins_count = 0
    for l in lines:
        t = l.split(';')[0].strip()
        if not t or t.endswith(':') or t.startswith('.'):
            out.append(l); continue
        c = Ins(l)
        dist, req = 0, 0
        for p in reversed(hist[-24:]):
            n = need(p, c)
            if n - dist > req: req = n - dist
            dist += p.states
            if dist >= 20: break
        if req > 0:
            nop = Ins(f"s_nop {req-1}")
            out.append(f"s_nop {req-1} ; hazard")
            hist.append(nop); ins_count += 1
            if verbose: print("hazard nop", req, "before", l)
        out.append(l); hist.append(c)
        if c.mn in ('s_branch', 's_endpgm', 's_setpc_b64'): hist = []
    return out
```

```python
import sys, math
from asmlib import *

NAME = "concat_heads__sliding_block__ssm_conv_h3__prompt"

class Cfg:
    prof = False
    qmap = 3
    rot = True
    spin_bound = 1 << 18
    x_nt = False
    stop_after = None

WS_QKV, WS_OF, WS_OH, WS_U, WS_Y = 0, 0x800000, 0xA00000, 0xB00000, 0xE00000
WS_FQ, WS_FO, WS_FU, WS_FY, WS_PROF = 0x1100000, 0x1120000, 0x1140000, 0x1144000, 0x1200000
WS_SIZE = 0x1400000
PL = 32768
L_WR, L_XR, L_X3, L_X2, L_CNT = 0, 49152, 73728, 114688, 163584
KVP = 8256
CV_E, CV_O, CV_U, CV_STR = 0, 4160, 8320, 13056
LDS_SIZE = 163840
S_WAVE, S_G, S_I, S_RB, S_CB, S_ACT, S_KS = 3, 4, 5, 6, 7, 8, 9
P_X, P_W, P_WO, P_Q, P_K, P_V, P_SH, P_H, P_D, P_OUT, P_DBG, P_WS = 16, 18, 20, 22, 24, 26, 28, 30, 32, 34, 36, 38
R_X, R_W, R_WS, R_A, R_B, R_C = 40, 44, 48, 52, 56, 60
S_TAG = 64
T0, T1, T2, T3, T4, T5, T6, T7 = 66, 67, 68, 69, 70, 71, 72, 73
S_SPIN = 74
S_STAMP = 76

def srd(A, r, p, nbytes):
    A(f"s_mov_b32 s{r}, s{p}")
    A(f"s_mov_b32 s{r+1}, s{p+1}")
    A(f"s_mov_b32 s{r+2}, {nbytes}")
    A(f"s_mov_b32 s{r+3}, 0x20000")

def gen(cfg):
    A = Asm()
    def stamp(k):
        if cfg.prof:
            A(f"s_memrealtime s[{S_STAMP+2*k}:{S_STAMP+2*k+1}]")
    def finish(vt):
        if cfg.prof:
            stamp(11)
            A("s_waitcnt lgkmcnt(0)")
            A(f"s_lshl_b32 s{T0}, s2, 3")
            A(f"s_add_u32 s{T0}, s{T0}, s{S_WAVE}")
            A(f"s_lshl_b32 s{T0}, s{T0}, 7")
            A(f"s_add_u32 s{T0}, s{T0}, {WS_PROF}")
            A(f"v_mov_b32 v{vt}, 0")
            A("s_mov_b64 exec, 1")
            for k in range(12):
                A(f"v_mov_b32 v{vt+2}, s{S_STAMP+2*k}")
                A(f"v_mov_b32 v{vt+3}, s{S_STAMP+2*k+1}")
                A(f"buffer_store_dwordx2 v[{vt+2}:{vt+3}], v{vt}, s[{R_WS}:{R_WS+3}], s{T0} offen offset:{8*k}")
                A("s_nop 1")
        A("s_endpgm")

    def get_tag(vt):
        L = A.newlabel("tag"); D = A.newlabel("tagd")
        A(f"v_mov_b32 v{vt+2}, 0")
        A(f"s_mov_b32 s{S_SPIN}, {cfg.spin_bound}")
        A.label(L)
        A(f"global_load_dwordx2 v[{vt}:{vt+1}], v{vt+2}, s[{P_DBG}:{P_DBG+1}] sc1")
        A("s_waitcnt vmcnt(0)")
        A(f"v_readfirstlane_b32 s{S_TAG}, v{vt}")
        A(f"v_readfirstlane_b32 s{S_TAG+1}, v{vt+1}")
        A(f"s_cmp_lg_u32 s{S_TAG+1}, 0")
        A(f"s_cbranch_scc1 {D}")
        A(f"s_sub_u32 s{S_SPIN}, s{S_SPIN}, 1")
        A(f"s_cbranch_scc0 {L}")
        A.label(D)

    def set_flag(soff, vt):
        A(f"v_mov_b32 v{vt}, s{S_TAG}")
        A(f"v_mov_b32 v{vt+1}, s{S_TAG+1}")
        A(f"v_mov_b32 v{vt+2}, 0")
        A("s_mov_b64 exec, 1")
        A(f"buffer_store_dwordx2 v[{vt}:{vt+1}], v{vt+2}, s[{R_WS}:{R_WS+3}], s{soff} offen sc1")
        A("s_mov_b64 exec, -1")

    def poll(voff, vt, nflag_per_lane=1, nloads=1, stride=1024):
        L = A.newlabel("poll"); D = A.newlabel("polld")
        A(f"s_mov_b32 s{S_SPIN}, {cfg.spin_bound}")
        A.label(L)
        w = 2 * nflag_per_lane
        for n in range(nloads):
            A(f"buffer_load_dwordx{w} v[{vt+n*w}:{vt+n*w+w-1}], v{voff}, s[{R_WS}:{R_WS+3}], 0 offen offset:{n*stride} sc1")
        A("s_waitcnt vmcnt(0)")
        tot = nflag_per_lane * nloads
        A(f"v_cmp_ne_u64 vcc, s[{S_TAG}:{S_TAG+1}], v[{vt}:{vt+1}]")
        for k in range(1, tot):
            A(f"v_cmp_ne_u64 s[{T6}:{T6+1}], s[{S_TAG}:{S_TAG+1}], v[{vt+2*k}:{vt+2*k+1}]")
            A(f"s_or_b64 vcc, vcc, s[{T6}:{T6+1}]")
        A(f"s_cmp_eq_u64 vcc, 0")
        A(f"s_cbranch_scc1 {D}")
        A(f"s_sub_u32 s{S_SPIN}, s{S_SPIN}, 1")
        A(f"s_cbranch_scc0 {L}")
        A.label(D)

    def minibar(idx, vt):
        L = A.newlabel("mb"); D = A.newlabel("mbd")
        A(f"v_mov_b32 v{vt}, {L_CNT + 4*idx}")
        A(f"v_mov_b32 v{vt+1}, 1")
        A("s_mov_b64 exec, 1")
        A(f"ds_add_u32 v{vt}, v{vt+1}")
        A("s_mov_b64 exec, -1")
        A(f"s_mov_b32 s{S_SPIN}, {cfg.spin_bound*4}")
        A.label(L)
        A(f"ds_read_b32 v{vt+1}, v{vt}")
        A("s_waitcnt lgkmcnt(0)")
        A(f"v_readfirstlane_b32 s{T6}, v{vt+1}")
        A(f"s_cmp_ge_u32 s{T6}, 4")
        A(f"s_cbranch_scc1 {D}")
        A(f"s_sub_u32 s{S_SPIN}, s{S_SPIN}, 1")
        A(f"s_cbranch_scc0 {L}")
        A.label(D)

    A("s_cmp_ge_u32 s2, 256")
    A("s_cbranch_scc1 .Lexit")
    A("s_load_dwordx16 s[16:31], s[0:1], 0")
    A("s_load_dwordx8 s[32:39], s[0:1], 64")
    A("v_lshrrev_b32 v1, 6, v0")
    A("v_and_b32 v0, 63, v0")
    A(f"v_readfirstlane_b32 s{S_WAVE}, v1")
    A(f"s_and_b32 s{S_G}, s2, 7")
    A(f"s_lshr_b32 s{S_I}, s2, 3")
    if cfg.qmap == 3:
        A(f"s_lshr_b32 s{T0}, s{S_G}, 2")
        A(f"s_lshl_b32 s{T0}, s{T0}, 3")
        A(f"s_and_b32 s{T1}, s{S_I}, 7")
        A(f"s_add_u32 s{S_RB}, s{T0}, s{T1}")
        A(f"s_and_b32 s{T0}, s{S_G}, 3")
        A(f"s_lshl_b32 s{T0}, s{T0}, 2")
        A(f"s_lshr_b32 s{T1}, s{S_I}, 3")
        A(f"s_add_u32 s{S_CB}, s{T0}, s{T1}")
        A(f"s_mul_i32 s{T0}, s{S_CB}, 3")
        A(f"s_add_u32 s{S_KS}, s{T0}, s{S_RB}")
    elif cfg.qmap == 2:
        A(f"s_lshr_b32 s{T0}, s{S_G}, 1")
        A(f"s_lshl_b32 s{T0}, s{T0}, 2")
        A(f"s_and_b32 s{T1}, s{S_I}, 3")
        A(f"s_add_u32 s{S_RB}, s{T0}, s{T1}")
        A(f"s_and_b32 s{T0}, s{S_G}, 1")
        A(f"s_lshl_b32 s{T0}, s{T0}, 3")
        A(f"s_lshr_b32 s{T1}, s{S_I}, 2")
        A(f"s_add_u32 s{S_CB}, s{T0}, s{T1}")
        A(f"s_mul_i32 s{T0}, s{S_RB}, 3")
        A(f"s_add_u32 s{S_KS}, s{T0}, s{S_CB}")
    else:
        A(f"s_cmp_ge_u32 s{S_I}, 15")
        A(f"s_cselect_b32 s{T0}, 1, 0")
        A(f"s_cselect_b32 s{T1}, 15, 0")
        A(f"s_lshl_b32 s{S_RB}, s{S_G}, 1")
        A(f"s_add_u32 s{S_RB}, s{S_RB}, s{T0}")
        A(f"s_sub_u32 s{S_CB}, s{S_I}, s{T1}")
        A(f"s_mul_i32 s{T0}, s{T0}, 5")
        A(f"s_add_u32 s{S_KS}, s{T0}, s{S_CB}")
        A(f"s_add_u32 s{S_KS}, s{S_KS}, s{S_G}")
    if cfg.rot:
        A(f"s_mul_i32 s{T0}, s{S_KS}, 205")
        A(f"s_lshr_b32 s{T0}, s{T0}, 11")
        A(f"s_mul_i32 s{T0}, s{T0}, 10")
        A(f"s_sub_u32 s{S_KS}, s{S_KS}, s{T0}")
    else:
        A(f"s_mov_b32 s{S_KS}, 0")
    A(f"s_cmp_lt_u32 s{S_WAVE}, 4")
    A("s_cbranch_scc1 .Lawave")

    vm = Cnt(A, "vmcnt", 63)
    HW = T5
    S_SW, S_SX, S_M = 10, 11, 12
    A(f"s_sub_u32 s{HW}, s{S_WAVE}, 4")
    A("v_lshrrev_b32 v5, 4, v0")
    A(f"s_lshl_b32 s{T0}, s{HW}, 4")
    A(f"v_add_u32 v6, s{T0}, v5")
    A("v_mul_u32_u24 v1, 3840, v6")
    A("v_lshlrev_b32 v6, 2, v5")
    A("v_and_b32 v7, 15, v0")
    A("v_xor_b32 v6, v6, v7")
    A("v_lshlrev_b32 v6, 4, v6")
    A(f"s_lshl_b32 s{T0}, s{S_CB}, 8")
    A(f"v_add3_u32 v1, v1, v6, s{T0}")
    A("v_lshrrev_b32 v6, 3, v0")
    A(f"s_lshl_b32 s{T0}, s{S_RB}, 7")
    A(f"s_lshl_b32 s{T1}, s{HW}, 4")
    A(f"s_add_u32 s{T1}, s{T1}, s{T0}")
    A(f"v_add_u32 v7, s{T1}, v6")
    A("v_mul_u32_u24 v2, 1280, v7")
    A("v_and_b32 v7, 7, v0")
    A("v_xor_b32 v7, v7, v5")
    A("v_lshlrev_b32 v7, 4, v7")
    A("v_add_u32 v2, v2, v7")
    A("v_xor_b32 v3, 64, v2")
    A("v_add_u32 v3, 10240, v3")
    A(f"s_lshl_b32 s{T1}, s{HW}, 3")
    A(f"s_add_u32 s{T1}, s{T1}, s{T0}")
    A(f"s_add_u32 s{T1}, s{T1}, 64")
    A(f"v_add_u32 v4, s{T1}, v6")
    A("v_mul_u32_u24 v4, 1280, v4")
    A(f"s_and_b32 s{T1}, s{HW}, 1")
    A(f"s_lshl_b32 s{T1}, s{T1}, 6")
    A(f"v_xor_b32 v7, s{T1}, v7")
    A("v_add_u32 v4, v4, v7")
    A(f"s_mul_i32 s{S_SW}, s{S_KS}, 245760")
    A(f"s_lshl_b32 s{S_SX}, s{S_KS}, 7")
    A(f"s_lshl_b32 s13, s{HW}, 12")
    A(f"s_lshl_b32 s14, s{HW}, 11")
    A(f"s_lshl_b32 s15, s{HW}, 10")
    A("s_waitcnt lgkmcnt(0)")
    srd(A, R_X, P_X, 2621440)
    srd(A, R_W, P_W, 2457600)
    stamp(0)
    A(f"s_cmp_ge_u32 s{S_CB}, 15")
    A("s_cbranch_scc1 .Lh_spare")
    XNT = " nt" if cfg.x_nt else ""
    def adv_k():
        A(f"s_add_u32 s{S_SW}, s{S_SW}, 245760")
        A(f"s_add_u32 s{S_SX}, s{S_SX}, 128")
        A(f"s_cmp_eq_u32 s{S_SX}, 1280")
        A(f"s_cselect_b32 s{S_SW}, 0, s{S_SW}")
        A(f"s_cselect_b32 s{S_SX}, 0, s{S_SX}")
    def issue_stage(st):
        slot = st % 3
        for j in range(2):
            A(f"s_add_u32 m0, s14, {L_XR + slot*8192 + j*1024}")
            A(f"buffer_load_dwordx4 v{2+j}, s[{R_X}:{R_X+3}], s{S_SX} offen{XNT} lds")
            vm.issue(('st', st))
        for j in range(4):
            A(f"s_add_u32 m0, s13, {L_WR + slot*16384 + j*1024}")
            if j == 0:
                A(f"buffer_load_dwordx4 v1, s[{R_W}:{R_W+3}], s{S_SW} offen lds")
            else:
                A(f"s_add_u32 s{T0}, s{S_SW}, {j*15360}")
                A(f"buffer_load_dwordx4 v1, s[{R_W}:{R_W+3}], s{T0} offen lds")
            vm.issue(('st', st))
        adv_k()
    def issue_x2(n):
        tile, st = n // 10, n % 10
        base = (L_X2 if tile == 0 else L_X3) + st * 4096
        A(f"s_add_u32 m0, s15, {base}")
        if tile == 0:
            A(f"buffer_load_dwordx4 v4, s[{R_X}:{R_X+3}], s{S_SX} offen{XNT} lds")
        else:
            A(f"s_add_u32 s{T0}, s{S_SX}, {32*1280}")
            A(f"buffer_load_dwordx4 v4, s[{R_X}:{R_X+3}], s{T0} offen{XNT} lds")
        vm.issue(('x2', n))
        A(f"s_add_u32 s{S_SX}, s{S_SX}, 128")
        A(f"s_cmp_eq_u32 s{S_SX}, 1280")
        A(f"s_cselect_b32 s{S_SX}, 0, s{S_SX}")
    issue_stage(0)
    issue_stage(1)
    for st in range(10):
        vm.wait(('st', st))
        A("s_barrier")
        if st == 0: stamp(1)
        if st + 2 <= 9: issue_stage(st + 2)
        if st == 8:
            for n in range(0, 6): issue_x2(n)
        if st == 9:
            for n in range(6, 12): issue_x2(n)
    vm.wait(('x2', 3))
    A("s_barrier")
    stamp(2)
    for n in range(12, 20): issue_x2(n)
    vm.wait(('x2', 9))
    A("s_barrier")
    A("s_branch .Lh_b1")
    A.label(".Lh_spare")
    A("s_barrier")
    A.label(".Lh_b1")

    srd(A, R_WS, P_WS, WS_SIZE)
    srd(A, R_A, P_K, 2621440)
    srd(A, R_B, P_V, 2621440)
    srd(A, R_C, P_SH, 5120)
    S_TB = 10
    A(f"s_lshl_b32 s{S_TB}, s{S_G}, 5")
    A(f"s_add_u32 s{S_TB}, s{S_TB}, s{S_I}")
    A(f"s_mov_b32 s11, 5120")
    def b1_regs(t):
        b = 16 + 32 * t
        return dict(k=b, v=b + 11, w=b + 20, off=b + 24, offh=b + 25, offw=b + 26)
    def b1_issue(t, stask):
        r = b1_regs(t)
        A(f"s_lshl_b32 s{T0}, s{stask}, 6")
        A(f"v_add_u32 v{r['offw']}, s{T0}, v0")
        A(f"s_mul_i32 s{T1}, s{S_TB}, 10240")
        A(f"v_lshlrev_b32 v{r['off']}, 2, v{r['offw']}")
        A(f"v_add_u32 v{r['off']}, s{T1}, v{r['off']}")
        A(f"s_cmp_eq_u32 s{S_TB}, 0")
        A(f"s_cselect_b32 s{T1}, 0x40000000, -3840")
        A(f"v_add_u32 v{r['offh']}, s{T1}, v{r['off']}")
        A(f"v_lshlrev_b32 v{r['offw']}, 4, v{r['offw']}")
        A(f"buffer_load_dwordx4 v[{r['w']}:{r['w']+3}], v{r['offw']}, s[{R_C}:{R_C+3}], 0 offen")
        vm.issue(('b1', t))
        for j in range(3):
            A(f"buffer_load_dword v{r['k']+j}, v{r['offh']}, s[{R_A}:{R_A+3}], 0 offen offset:{j*1280} nt")
            vm.issue(('b1', t))
        for j in range(8):
            so = "0" if j < 4 else "s11"
            A(f"buffer_load_dword v{r['k']+3+j}, v{r['off']}, s[{R_A}:{R_A+3}], {so} offen offset:{(j%4)*1280} nt")
            vm.issue(('b1', t))
        for j in range(8):
            so = "0" if j < 4 else "s11"
            A(f"buffer_load_dword v{r['v']+j}, v{r['off']}, s[{R_B}:{R_B+3}], {so} offen offset:{(j%4)*1280} nt")
            vm.issue(('b1', t))
    def b1_compute(t):
        r = b1_regs(t)
        KL, KH, WU, UU, VT, OUT = 96, 108, 120, 128, 136, 140
        A("s_mov_b32 s12, 0xffff0000")
        for c in range(2):
            for d in range(2):
                A(f"v_lshlrev_b32 v{WU+4*c+2*d}, 16, v{r['w']+2*c+d}")
                A(f"v_and_b32 v{WU+4*c+2*d+1}, s12, v{r['w']+2*c+d}")
        for j in range(11):
            A(f"v_lshlrev_b32 v{KL+j}, 16, v{r['k']+j}")
            A(f"v_and_b32 v{KH+j}, s12, v{r['k']+j}")
        for c in range(2):
            K = KL if c == 0 else KH
            for j in range(8):
                A(f"v_mul_f32 v{UU+j}, v{K+j}, v{WU+4*c+3}")
            for d in (2, 1, 0):
                for j in range(8):
                    A(f"v_fmac_f32 v{UU+j}, v{K+j+3-d}, v{WU+4*c+d}")
            for j in range(8):
                if c == 0: A(f"v_lshlrev_b32 v{VT}, 16, v{r['v']+j}")
                else: A(f"v_and_b32 v{VT}, s12, v{r['v']+j}")
                A(f"v_mul_f32 v{UU+j}, v{UU+j}, v{VT}")
            for m in range(4):
                A(f"v_cvt_pk_bf16_f32 v{OUT+4*c+m}, v{UU+7-2*m}, v{UU+6-2*m}")
        A(f"s_mul_i32 s{T0}, s{S_TB}, 10240")
        A(f"s_add_u32 s{T0}, s{T0}, {WS_U}")
        A(f"s_add_u32 s{T1}, s{T0}, 5120")
        A(f"buffer_store_dwordx4 v[{OUT}:{OUT+3}], v{r['offw']}, s[{R_WS}:{R_WS+3}], s{T0} offen sc1")
        A(f"buffer_store_dwordx4 v[{OUT+4}:{OUT+7}], v{r['offw']}, s[{R_WS}:{R_WS+3}], s{T1} offen sc1")
    def b1_flag(stask):
        A(f"s_lshl_b32 s{T0}, s{stask}, 8")
        A(f"s_add_u32 s{T0}, s{T0}, s{S_TB}")
        A(f"s_lshl_b32 s{T0}, s{T0}, 3")
        A(f"s_add_u32 s{T0}, s{T0}, {WS_FU}")
        set_flag(T0, 8)

    b1_issue(0, HW)
    A(f"s_cmp_ge_u32 s{S_CB}, 15")
    A("s_cbranch_scc1 .Lh_nos3")
    vm.wait(('x2', 19))
    A("s_barrier")
    A.label(".Lh_nos3")
    stamp(3)
    A(f"s_cmp_eq_u32 s{HW}, 3")
    A("s_cbranch_scc1 .Lh_w7")

    S_SIG, S_CH, S_SLOT, S_HASC = 13, 14, 15, 75
    A(f"s_lshr_b32 s{T0}, s{S_I}, 1")
    A(f"s_mul_i32 s{T0}, s{T0}, 5")
    A(f"s_and_b32 s{T1}, s{S_I}, 1")
    A(f"s_mul_i32 s{T2}, s{T1}, 3")
    A(f"s_add_u32 s{T0}, s{T0}, s{T2}")
    A(f"s_mul_i32 s{T2}, s{S_G}, 80")
    A(f"s_add_u32 s{T0}, s{T0}, s{T2}")
    A(f"s_add_u32 s{S_SIG}, s{T0}, s{HW}")
    A(f"s_add_u32 s{S_HASC}, s{T1}, s{HW}")
    A(f"s_cmp_ge_u32 s{S_SIG}, 320")
    A(f"s_cselect_b32 s{T0}, 639, 0")
    A(f"s_lshl_b32 s{S_CH}, s{S_SIG}, 1")
    A(f"s_sub_u32 s{S_CH}, s{S_CH}, s{T0}")
    A(f"s_mul_i32 s{S_SLOT}, s{HW}, {CV_STR}")
    A(f"s_add_u32 s{S_SLOT}, s{S_SLOT}, {L_X2}")
    A(f"s_cmp_ge_u32 s{S_HASC}, 3")
    A("s_cbranch_scc1 .Lh_noh")
    srd(A, R_X, P_H, 2621440)
    A(f"s_lshl_b32 s{T0}, s{S_CH}, 12")
    A(f"s_load_dword s{T3}, s[{P_H}:{P_H+1}], s{T0}")
    A(f"s_lshr_b32 s{T1}, s{S_CH}, 1")
    A(f"s_lshl_b32 s{T1}, s{T1}, 2")
    A(f"s_load_dword s{T4}, s[{P_D}:{P_D+1}], s{T1}")
    A("v_lshlrev_b32 v1, 4, v0")
    A("v_add_u32 v2, 2, v1")
    A(f"s_add_u32 m0, s{S_SLOT}, {CV_E + 32}")
    for j in range(4):
        A(f"buffer_load_dwordx4 v1, s[{R_X}:{R_X+3}], s{T0} offen offset:{j*1024} lds")
    A(f"s_add_u32 m0, s{S_SLOT}, {CV_O + 32}")
    for j in range(4):
        A(f"buffer_load_dwordx4 v2, s[{R_X}:{R_X+3}], s{T0} offen offset:{j*1024} lds")
    A("v_mov_b32 v4, 0")
    A("v_mov_b32 v5, 0")
    A("v_mov_b32 v6, 0")
    A("s_waitcnt lgkmcnt(0)")
    A(f"s_lshl_b32 s{T3}, s{T3}, 16")
    A(f"v_mov_b32 v7, s{T3}")
    A("v_cmp_eq_u32 vcc, 35, v0")
    A("v_cndmask_b32 v7, 0, v7, vcc")
    A(f"v_add_u32 v3, {CV_U}, v1")
    A(f"v_add_u32 v8, {CV_E - 512}, v1")
    A("v_cmp_lt_u32 vcc, 31, v0")
    A("v_cndmask_b32 v3, v3, v8, vcc")
    A(f"v_add_u32 v8, {CV_O - 544}, v1")
    A("v_cmp_lt_u32 vcc, 33, v0")
    A("v_cndmask_b32 v3, v3, v8, vcc")
    A(f"v_add_u32 v3, s{S_SLOT}, v3")
    A("s_mov_b32 exec_hi, 15")
    A("ds_write_b128 v3, v[4:7]")
    A("s_mov_b64 exec, -1")
    A.label(".Lh_noh")
    get_tag(8)
    vm.reset()
    b1_compute(0)
    A("s_waitcnt vmcnt(0)")
    b1_flag(HW)
    stamp(4)
    A(f"s_cmp_ge_u32 s{S_HASC}, 3")
    A("s_cbranch_scc1 .Lh_b3")

    A(f"s_lshr_b32 s{T0}, s{S_CH}, 7")
    A(f"s_lshl_b32 s{T0}, s{T0}, 11")
    A(f"s_add_u32 s{T0}, s{T0}, {WS_FU}")
    A(f"v_add_u32 v2, s{T0}, v1")
    poll(2, 8, nflag_per_lane=2, nloads=2)
    stamp(5)
    A("v_mul_u32_u24 v2, 10240, v0")
    A(f"s_lshl_b32 s{T0}, s{S_SIG}, 4")
    A(f"s_add_u32 s{T0}, s{T0}, {WS_U}")
    for j in range(4):
        A(f"s_add_u32 m0, s{S_SLOT}, {CV_U + 512 + j*1024}")
        A(f"buffer_load_dwordx4 v2, s[{R_WS}:{R_WS+3}], s{T0} offen sc1 lds")
        if j < 3: A(f"s_add_u32 s{T0}, s{T0}, {64*10240}")
    ACC, FA, FB, AD = 16, 48, 112, 176
    VA, VB = 4, 8
    A("v_and_b32 v9, 15, v0")
    A("v_lshrrev_b32 v10, 4, v0")
    A("v_lshlrev_b32 v11, 5, v9")
    A("v_lshl_add_u32 v11, v10, 4, v11")
    A(f"s_add_u32 s{T0}, s{S_SLOT}, {CV_U + 480}")
    A(f"v_add_u32 v{VB}, s{T0}, v11")
    A("v_lshlrev_b32 v11, 3, v10")
    A("v_sub_u32 v11, v9, v11")
    A("v_add_u32 v11, 25, v11")
    A("v_and_b32 v12, 1, v11")
    A(f"v_mul_u32_u24 v12, {CV_O}, v12")
    A("v_lshrrev_b32 v11, 1, v11")
    A("v_lshl_add_u32 v11, v11, 2, v12")
    A(f"v_add_u32 v{VA}, s{S_SLOT}, v11")
    for p in range(1, 4):
        A(f"v_add_u32 v{VA+p}, {1024*p}, v{VA}")
    A(f"s_and_b32 s{T0}, s{S_CH}, 1")
    A(f"s_lshl_b32 s{T0}, s{T0}, 4")
    A(f"s_lshr_b32 s{T4}, s{T4}, s{T0}")
    A(f"s_and_b32 s{T4}, s{T4}, 0xffff")
    A("v_and_b32 v11, 7, v9")
    A("v_sub_u32 v11, 7, v11")
    A("v_and_b32 v12, 1, v11")
    A("v_lshlrev_b32 v12, 4, v12")
    A(f"v_lshlrev_b32 v12, v12, s{T4}") if False else None
    A(f"v_mov_b32 v13, s{T4}")
    A("v_lshlrev_b32 v12, v12, v13")
    A("v_lshrrev_b32 v13, 3, v9")
    A("v_add_u32 v13, 2, v13")
    A("v_cmp_eq_u32 vcc, v13, v10")
    A("v_cndmask_b32 v12, 0, v12, vcc")
    A("v_lshrrev_b32 v11, 1, v11")
    for m in range(4):
        A(f"v_cmp_eq_u32 vcc, {m}, v11")
        A(f"v_cndmask_b32 v{AD+m}, 0, v12, vcc")
    A("s_waitcnt vmcnt(0) lgkmcnt(0)")
    stamp(6)
    def conv_reads(buf):
        L = []
        for g in range(8):
            L.append(f"ds_read_b128 v[{FB+32*buf+4*g}:{FB+32*buf+4*g+3}], v{VB} offset:{512*g}")
            a = FA + 32*buf + 4*g
            o = 128 * (g & 1)
            L.append(f"ds_read2_b32 v[{a}:{a+1}], v{VA+(g>>1)} offset0:{o} offset1:{o+1}")
            L.append(f"ds_read2_b32 v[{a+2}:{a+3}], v{VA+(g>>1)} offset0:{o+2} offset1:{o+3}")
        return L
    def conv_adv():
        return [f"v_add_u32 v{VA+p}, 64, v{VA+p}" for p in range(4)] + [f"v_subrev_u32 v{VB}, 64, v{VB}"]
    def conv_iter(buf, fill):
        fill = list(fill)
        for g in range(8):
            for j in range(8 - g):
                i = g + j
                A(f"v_mfma_f32_16x16x32_bf16 v[{ACC+4*i}:{ACC+4*i+3}], v[{FA+32*buf+4*g}:{FA+32*buf+4*g+3}], v[{FB+32*buf+4*j}:{FB+32*buf+4*j+3}], v[{ACC+4*i}:{ACC+4*i+3}]")
                if fill: A(fill.pop(0))
        assert not fill
    rd = conv_reads(0)
    for k, l in enumerate(rd):
        A(l)
        if k == 11: A("s_waitcnt lgkmcnt(4)")
    for l in conv_adv(): A(l)
    A("s_waitcnt lgkmcnt(0)")
    for i in range(8):
        A(f"v_mfma_f32_16x16x32_bf16 v[{ACC+4*i}:{ACC+4*i+3}], v[{AD}:{AD+3}], v[{FB+4*i}:{FB+4*i+3}], 0")
    A(f"s_mov_b32 s{T0}, 4")
    A.label(".Lconv")
    conv_iter(0, conv_reads(1) + conv_adv())
    A("s_waitcnt lgkmcnt(0)")
    conv_iter(1, conv_reads(0) + conv_adv())
    A("s_waitcnt lgkmcnt(0)")
    A(f"s_sub_u32 s{T0}, s{T0}, 1")
    A(f"s_cmp_lg_u32 s{T0}, 0")
    A("s_cbranch_scc1 .Lconv")
    stamp(7)
    A("v_and_b32 v11, 1, v10")
    A("v_lshlrev_b32 v11, 9, v11")
    A("v_lshrrev_b32 v12, 1, v10")
    A("v_lshl_add_u32 v11, v12, 8, v11")
    A("v_lshl_add_u32 v11, v9, 4, v11")
    A(f"s_lshl_b32 s{T0}, s{S_CH}, 12")
    A(f"s_add_u32 s{T0}, s{T0}, {WS_Y}")
    for p in range(4):
        E = FA + 4 * p
        a, b = ACC + 8 * p, ACC + 8 * p + 4
        A(f"v_cvt_pk_bf16_f32 v{E}, v{a}, v{a+1}")
        A(f"v_cvt_pk_bf16_f32 v{E+1}, v{a+2}, v{a+3}")
        A(f"v_cvt_pk_bf16_f32 v{E+2}, v{b}, v{b+1}")
        A(f"v_cvt_pk_bf16_f32 v{E+3}, v{b+2}, v{b+3}")
    for p in range(4):
        E = FA + 4 * p
        A(f"v_permlane16_swap_b32 v{E}, v{E+2}")
        A(f"v_permlane16_swap_b32 v{E+1}, v{E+3}")
        A(f"buffer_store_dwordx4 v[{E}:{E+3}], v11, s[{R_WS}:{R_WS+3}], s{T0} offen offset:{1024*p} sc1")
    A("s_waitcnt vmcnt(0)")
    A(f"s_lshl_b32 s{T0}, s{S_CH}, 3")
    A(f"s_add_u32 s{T0}, s{T0}, {WS_FY}")
    set_flag(T0, 8)
    stamp(8)
    A("s_branch .Lh_b3")

    A.label(".Lh_w7")
    A(f"s_mov_b32 s13, 4")
    b1_issue(1, 13)
    get_tag(8)
    vm.reset()
    b1_compute(0)
    b1_compute(1)
    A("s_waitcnt vmcnt(0)")
    b1_flag(HW)
    b1_flag(13)
    stamp(4)

    A.label(".Lh_b3")
    srd(A, R_A, P_Q, 2621440)
    srd(A, R_B, P_OUT, 5242880)
    S_TASK = 13
    A(f"s_mov_b32 s{S_TASK}, s{HW}")
    A("s_mov_b32 s12, 0xffff0000")
    A.label(".Lb3_loop")
    QQ, YY, TT = 16, 24, 32
    A(f"s_lshl_b32 s{T0}, s{S_TASK}, 6")
    A(f"v_add_u32 v1, s{T0}, v0")
    A("v_lshlrev_b32 v2, 2, v1")
    A(f"s_mul_i32 s{T1}, s{S_TB}, 10240")
    A(f"s_add_u32 s{T2}, s{T1}, 5120")
    for j in range(8):
        A(f"buffer_load_dword v{QQ+j}, v2, s[{R_A}:{R_A+3}], s{T1 if j < 4 else T2} offen offset:{(j%4)*1280} nt")
    A("v_lshlrev_b32 v3, 4, v1")
    A(f"v_add_u32 v3, {WS_FY}, v3")
    poll(3, 8, nflag_per_lane=2, nloads=1)
    stamp(9)
    A("v_lshlrev_b32 v3, 13, v1")
    A(f"s_lshl_b32 s{T0}, s{S_G}, 9")
    A(f"s_and_b32 s{T1}, s{S_I}, 1")
    A(f"s_lshl_b32 s{T1}, s{T1}, 8")
    A(f"s_add_u32 s{T0}, s{T0}, s{T1}")
    A(f"s_lshr_b32 s{T1}, s{S_I}, 1")
    A(f"s_lshl_b32 s{T1}, s{T1}, 4")
    A(f"s_add_u32 s{T0}, s{T0}, s{T1}")
    A(f"s_add_u32 s{T0}, s{T0}, {WS_Y}")
    A(f"s_add_u32 s{T1}, s{T0}, 4096")
    A(f"buffer_load_dwordx4 v[{YY}:{YY+3}], v3, s[{R_WS}:{R_WS+3}], s{T0} offen sc1")
    A(f"buffer_load_dwordx4 v[{YY+4}:{YY+7}], v3, s[{R_WS}:{R_WS+3}], s{T1} offen sc1")
    A(f"s_mul_i32 s{T0}, s{S_TB}, 20480")
    A(f"s_add_u32 s{T0}, s{T0}, 1280")
    A("s_waitcnt vmcnt(0)")
    for j in range(8):
        t = TT + 4 * (j & 1)
        A(f"v_lshlrev_b32 v{t}, 16, v{QQ+j}")
        A(f"v_and_b32 v{t+1}, s12, v{QQ+j}")
        for c in range(2):
            y = YY + 4 * c + (j >> 1)
            if j & 1: A(f"v_and_b32 v{t+2+c}, s12, v{y}")
            else: A(f"v_lshlrev_b32 v{t+2+c}, 16, v{y}")
        A(f"v_mul_f32 v{t}, v{t}, v{t+2}")
        A(f"v_mul_f32 v{t+1}, v{t+1}, v{t+3}")
        A(f"v_cvt_pk_bf16_f32 v{QQ+j}, v{t}, v{t+1}")
        A(f"buffer_store_dword v{QQ+j}, v2, s[{R_B}:{R_B+3}], s{T0} offen offset:{(j&1)*2560}")
        if j & 1: A(f"s_add_u32 s{T0}, s{T0}, 5120")
    stamp(10)
    A(f"s_cmp_eq_u32 s{S_TASK}, 3")
    A(f"s_mov_b32 s{S_TASK}, 4")
    A("s_cbranch_scc1 .Lb3_loop")
    finish(8)

    A.label(".Lawave")
    lg = Cnt(A, "lgkmcnt", 15)
    WF, AC, XF = 8, 168, 216
    A(f"s_getpc_b64 s[{T0}:{T0+1}]")
    A.label(".Lpc")
    A(f"s_sub_u32 s{T0}, s{T0}, .Lpc-{NAME}_kernel")
    A(f"s_subb_u32 s{T1}, s{T1}, 0")
    A(f"s_lshl_b32 s{T2}, s{S_I}, 2")
    A(f"s_add_u32 s{T2}, s{T2}, s{S_WAVE}")
    A(f"s_lshl_b32 s{T2}, s{T2}, 7")
    A(f"s_min_u32 s{T2}, s{T2}, .Lexit-{NAME}_kernel")
    A(f"s_load_dword s{T3}, s[{T0}:{T0+1}], s{T2}")
    A(f"s_add_u32 s{T2}, s{T2}, 16384")
    A(f"s_min_u32 s{T2}, s{T2}, .Lexit-{NAME}_kernel")
    A(f"s_load_dword s{T3}, s[{T0}:{T0+1}], s{T2}")
    A("v_mov_b32 v2, 0")
    A(f"v_lshlrev_b32 v1, 2, v0")
    A(f"v_add_u32 v1, {L_CNT}, v1")
    A("ds_write_b32 v1, v2")
    A("v_lshrrev_b32 v6, 5, v0")
    A("v_bfe_u32 v7, v0, 2, 2")
    A("v_lshl_add_u32 v1, v6, 3, v7")
    A("v_lshlrev_b32 v1, 8, v1")
    A(f"v_xor_b32 v7, s{S_WAVE}, v7")
    A("v_lshl_add_u32 v1, v7, 6, v1")
    A("v_bfe_u32 v7, v0, 4, 1")
    A("v_lshl_add_u32 v1, v7, 5, v1")
    A("v_and_b32 v7, 3, v0")
    A("v_lshl_add_u32 v1, v7, 3, v1")
    A("v_and_b32 v7, 31, v0")
    A("v_bfe_u32 v248, v0, 1, 3")
    A("v_xor_b32 v248, v248, v6")
    A("v_lshlrev_b32 v248, 4, v248")
    A("v_lshl_add_u32 v248, v7, 7, v248")
    for kk in range(4):
        A(f"v_xor_b32 v{2+kk}, {32*kk}, v248")
        A(f"v_add_u32 v{2+kk}, {L_XR}, v{2+kk}")
    A(f"s_lshl_b32 s{T0}, s{S_CB}, 4")
    A(f"s_lshl_b32 s{T1}, s{S_WAVE}, 2")
    A(f"s_add_u32 s{T0}, s{T0}, s{T1}")
    A(f"v_add_u32 v6, s{T0}, v6")
    A("v_lshlrev_b32 v6, 15, v6")
    A("v_lshl_add_u32 v6, v7, 4, v6")
    A(f"s_lshl_b32 s{T0}, s{S_RB}, 11")
    A(f"v_add_u32 v6, s{T0}, v6")
    S_SC = 10
    cscale = math.log2(math.e) / math.sqrt(20.0)
    import struct
    cbits = struct.unpack('<I', struct.pack('<f', cscale))[0]
    A(f"s_cmp_lt_u32 s{S_CB}, 5")
    A(f"s_cselect_b32 s{S_SC}, {cbits:#x}, 1.0")
    A("s_mov_b32 s11, 0x10000")
    A("s_waitcnt lgkmcnt(0)")
    srd(A, R_WS, P_WS, WS_SIZE)
    stamp(0)
    A(f"s_or_b32 s{T0}, s2, s{S_WAVE}")
    A(f"s_cmp_lg_u32 s{T0}, 0")
    A("s_cbranch_scc1 .La_notag")
    A(f"s_memrealtime s[{T0}:{T0+1}]")
    A("s_waitcnt lgkmcnt(0)")
    A(f"s_or_b32 s{T1}, s{T1}, 0x5a000000")
    A(f"v_mov_b32 v248, s{T0}")
    A(f"v_mov_b32 v249, s{T1}")
    A("v_mov_b32 v250, 0")
    A("s_mov_b64 exec, 1")
    A(f"global_store_dwordx2 v250, v[248:249], s[{P_DBG}:{P_DBG+1}] sc1")
    A("s_mov_b64 exec, -1")
    A.label(".La_notag")
    A(f"s_cmp_ge_u32 s{S_CB}, 15")
    A("s_cbranch_scc1 .La_spare")

    def mfma32(d, a, b, c):
        cs = "0" if c is None else f"v[{c}:{c+15}]"
        A(f"v_mfma_f32_32x32x16_bf16 v[{d}:{d+15}], v[{a}:{a+3}], v[{b}:{b+3}], {cs}")
    for st in range(10):
        slot = st % 3
        A("s_barrier")
        if st == 0: stamp(1)
        def reads(kk):
            w = WF + 16 * st + 4 * kk
            A(f"ds_read_b64_tr_b16 v[{w}:{w+1}], v1 offset:{L_WR + slot*16384 + kk*4096}")
            A(f"ds_read_b64_tr_b16 v[{w+2}:{w+3}], v1 offset:{L_WR + slot*16384 + kk*4096 + 1024}")
            A(f"ds_read_b128 v[{XF+8*kk}:{XF+8*kk+3}], v{2+kk} offset:{slot*8192}")
            A(f"ds_read_b128 v[{XF+8*kk+4}:{XF+8*kk+7}], v{2+kk} offset:{slot*8192 + 4096}")
            lg.issue(('w', kk)); lg.issue(('w', kk)); lg.issue(('x0', kk)); lg.issue(('x1', kk))
        reads(0); reads(1); reads(2)
        for kk in range(4):
            w = WF + 16 * st + 4 * kk
            first = (st == 0 and kk == 0)
            lg.wait(('x0', kk))
            mfma32(AC, w, XF + 8*kk, None if first else AC)
            if kk == 0: reads(3)
            lg.wait(('x1', kk))
            mfma32(AC + 16, w, XF + 8*kk + 4, None if first else AC + 16)
    def epi(acc, rowoff):
        L = []
        for r in range(16):
            L.append(f"v_mul_f32 v{acc+r}, s{S_SC}, v{acc+r}")
        for e in range(8):
            L.append(f"v_cvt_pk_bf16_f32 v{acc+e}, v{acc+2*e}, v{acc+2*e+1}")
        L.append(f"v_permlane32_swap_b32 v{acc}, v{acc+2}")
        L.append(f"v_permlane32_swap_b32 v{acc+1}, v{acc+3}")
        L.append(f"v_permlane32_swap_b32 v{acc+4}, v{acc+6}")
        L.append(f"v_permlane32_swap_b32 v{acc+5}, v{acc+7}")
        L.append(f"buffer_store_dwordx4 v[{acc}:{acc+3}], v6, s[{R_WS}:{R_WS+3}], 0 offen offset:{rowoff*16} sc1")
        L.append(f"buffer_store_dwordx4 v[{acc+4}:{acc+7}], v6, s[{R_WS}:{R_WS+3}], s11 offen offset:{rowoff*16} sc1")
        return L
    for kk in range(4):
        A(f"v_add_u32 v{2+kk}, {L_X2 - L_XR}, v{2+kk}")
    A("s_barrier")
    stamp(2)
    PF = 7
    def rd2(n):
        tile, m = n // 40, n % 40
        st, kk = m // 4, m % 4
        if n == 16:
            A("s_barrier")
        if n == 40:
            lg.wait_all()
            for k2 in range(4):
                A(f"v_subrev_u32 v{2+k2}, {L_X2 - L_X3}, v{2+k2}")
            A("s_barrier")
        f = XF + 4 * (n % 8)
        A(f"ds_read_b128 v[{f}:{f+3}], v{2+kk} offset:{st*4096}")
        lg.issue(('x', n))
    for n in range(PF): rd2(n)
    fill = []
    for n in range(80):
        tile, m = n // 40, n % 40
        acc = AC + 32 if tile == 0 else AC
        if n == 3: fill = epi(AC, 0) + epi(AC + 16, 32)
        if n == 43: fill = epi(AC + 32, 64)
        lg.wait(('x', n))
        mfma32(acc, WF + 4 * m, XF + 4 * (n % 8), None if m == 0 else acc)
        if n + PF < 80: rd2(n + PF)
        for _ in range(3):
            if fill: A(fill.pop(0))
    assert not fill
    stamp(3)
    for l in epi(AC, 96): A(l)
    get_tag(248)
    A(f"s_mul_i32 s{T0}, s{S_RB}, 60")
    A(f"s_lshl_b32 s{T1}, s{S_CB}, 2")
    A(f"s_add_u32 s{T0}, s{T0}, s{T1}")
    A(f"s_add_u32 s{T0}, s{T0}, s{S_WAVE}")
    A(f"s_lshl_b32 s{T0}, s{T0}, 7")
    A(f"s_add_u32 s{T0}, s{T0}, {WS_FQ}")
    set_flag(T0, 248)
    A("s_branch .La_att")
    A.label(".La_spare")
    A("s_barrier")
    get_tag(248)
    A.label(".La_att")
    stamp(4)

    S_GP, S_PAR, S_F0, S_MX, S_VALID = 10, 11, 12, 13, 14
    A(f"s_mul_i32 s{S_GP}, s{S_I}, 5")
    A(f"s_lshr_b32 s{S_GP}, s{S_GP}, 1")
    A(f"s_and_b32 s{S_PAR}, s{S_I}, 1")
    A(f"s_add_u32 s{S_F0}, s{S_GP}, s{S_PAR}")
    A(f"s_lshl_b32 s{T0}, s{S_PAR}, 1")
    A(f"s_sub_u32 s{S_MX}, s{S_GP}, s{T0}")
    A(f"s_add_u32 s{S_MX}, s{S_MX}, 2")
    A(f"s_lshl_b32 s{T0}, s{S_G}, 1")
    A(f"s_lshr_b32 s{T1}, s{S_WAVE}, 1")
    A(f"s_add_u32 s{T1}, s{T1}, s{T0}")
    A(f"s_add_u32 s{T0}, s{T0}, s{S_WAVE}")
    A(f"s_sub_i32 s{T0}, s{T0}, 2")
    A(f"s_cmp_ge_i32 s{T0}, 0")
    A(f"s_cselect_b32 s{S_VALID}, 1, 0")
    A(f"s_cselect_b32 s{T2}, s{T0}, s{T1}")
    A(f"s_cselect_b32 s{T3}, 20, 0")
    A("v_lshrrev_b32 v1, 1, v0")
    A("v_min_u32 v1, 2, v1")
    A("v_and_b32 v2, 1, v0")
    A("v_lshlrev_b32 v2, 1, v2")
    A(f"v_add_u32 v2, s{S_GP}, v2")
    A("v_lshrrev_b32 v2, 2, v2")
    A(f"v_mul_u32_u24 v3, s{T3}, v1")
    A("v_add_u32 v2, v2, v3")
    A(f"v_mov_b32 v3, s{T2}")
    A(f"v_mov_b32 v4, s{T1}")
    A("v_cmp_eq_u32 vcc, 0, v1")
    A("v_cndmask_b32 v3, v3, v4, vcc")
    A("v_mul_u32_u24 v3, 60, v3")
    A("v_add_u32 v2, v2, v3")
    A("v_lshlrev_b32 v2, 7, v2")
    A(f"v_add_u32 v2, {WS_FQ}, v2")
    SB, PB, OA, MD, MF, QF, KF, VF = 16, 48, 64, 96, 112, 128, 140, 152
    VK1, VK2, VV = 4, 5, 6
    A("v_and_b32 v7, 31, v0")
    A("v_lshrrev_b32 v8, 5, v0")
    A("v_lshlrev_b32 v9, 2, v8")
    A("v_sub_u32 v9, v7, v9")
    A("v_mov_b32 v10, 0xf149f2ca")
    for r in range(16):
        A(f"v_cmp_le_i32 vcc, {8*(r>>2) + (r&3)}, v9")
        A(f"v_cndmask_b32 v{MD+r}, v10, 0, vcc") if False else None
        A(f"v_cndmask_b32 v{MF+r}, 0, v10, vcc")
        A(f"v_sub_f32 v{MD+r}, v10, v{MF+r}")
    A(f"s_lshl_b32 s{T4}, s{S_WAVE}, 10")
    A(f"v_mul_u32_u24 v{VK1}, {KVP}, v8")
    A(f"v_lshl_add_u32 v{VK1}, v7, 4, v{VK1}")
    A(f"v_add_u32 v{VK1}, s{T4}, v{VK1}")
    A(f"s_lshl_b32 s{T5}, s{S_PAR}, 3")
    A(f"s_add_u32 s{T5}, s{T5}, s{T4}")
    A(f"s_add_u32 s{T5}, s{T5}, {2*KVP}")
    A(f"v_lshlrev_b32 v{VK2}, 4, v7")
    A(f"v_add_u32 v{VK2}, s{T5}, v{VK2}")
    A("v_bfe_u32 v11, v0, 2, 2")
    A("v_lshl_add_u32 v11, v8, 2, v11")
    A("v_bfe_u32 v12, v0, 1, 1")
    A(f"v_mul_u32_u24 v12, {KVP}, v12")
    A("v_and_b32 v13, 1, v0")
    A("v_lshl_add_u32 v12, v13, 3, v12")
    A("v_and_b32 v13, 3, v0")
    A("v_min_u32 v13, 1, v13")
    A(f"v_xor_b32 v13, s{S_PAR}, v13")
    A("v_lshlrev_b32 v13, 3, v13")
    A(f"v_add_u32 v13, {2*KVP}, v13")
    A("v_and_b32 v14, 16, v0")
    A("v_cmp_eq_u32 vcc, 0, v14")
    A("v_cndmask_b32 v12, v13, v12, vcc")
    A(f"v_lshl_add_u32 v{VV}, v11, 4, v12")
    A(f"s_add_u32 s{T4}, s{T4}, {3*KVP}")
    A(f"v_add_u32 v{VV}, s{T4}, v{VV}")
    A(f"s_lshl_b32 s{T0}, s{T0}, 11")
    A(f"s_cmp_eq_u32 s{S_VALID}, 1")
    A(f"s_cselect_b32 s{T0}, s{T0}, 0x40000000")
    A("v_lshlrev_b32 v11, 4, v0")
    A(f"v_add_u32 v11, s{T0}, v11")
    A(f"s_lshl_b32 s{T0}, s{S_G}, 2")
    A(f"s_add_u32 s{T0}, s{T0}, s{S_WAVE}")
    A(f"s_lshl_b32 s15, s{T0}, 10")
    A("v_lshlrev_b32 v13, 4, v7")
    A("v_add_u32 v13, s15, v13")
    A(f"v_add_u32 v12, s{S_F0}, v8")
    A("v_lshl_add_u32 v12, v12, 15, v13")
    A("v_lshl_add_u32 v13, v8, 30, v13")
    A(f"s_lshl_b32 s{T0}, s{S_WAVE}, 11")
    A(f"s_lshl_b32 s{T1}, s{S_PAR}, 3")
    A(f"s_sub_u32 s{T0}, s{T0}, s{T1}")
    A(f"s_add_u32 s{T0}, s{T0}, {5*KVP + 8}")
    A("v_lshlrev_b32 v14, 4, v0")
    A(f"v_add_u32 v14, s{T0}, v14")
    poll(2, 250)
    stamp(5)
    A(f"s_lshl_b32 s{T0}, s{S_F0}, 15")
    A(f"s_lshl_b32 s{T1}, s{S_MX}, 15")
    A(f"s_lshl_b32 s{T2}, s{S_WAVE}, 11")
    A(f"s_lshl_b32 s{T3}, s{S_PAR}, 3")
    A(f"s_add_u32 s{T3}, s{T3}, s{T1}")
    for qb in range(2):
        A(f"buffer_load_dwordx4 v[{QF+6*qb}:{QF+6*qb+3}], v12, s[{R_WS}:{R_WS+3}], 0 offen offset:{512*qb} sc1")
        A(f"buffer_load_dwordx2 v[{QF+6*qb+4}:{QF+6*qb+5}], v13, s[{R_WS}:{R_WS+3}], s{T3} offen offset:{512*qb} sc1")
    for p in (5, 0, 1, 2, 3, 4):
        sec = 1 + p // 3
        k = p % 3
        src, add = (T0, sec*80*PL + k*PL) if k < 2 else (T1, sec*80*PL)
        A(f"s_add_u32 s{T4}, s{src}, {add}")
        A(f"s_add_u32 m0, s{T2}, {p*KVP}")
        for j in range(2):
            A(f"buffer_load_dwordx4 v11, s[{R_WS}:{R_WS+3}], s{T4} offen offset:{j*1024} sc1 lds")
    A(f"s_cmp_eq_u32 s{S_VALID}, 1")
    A(f"s_cselect_b32 s{T0}, 0x3f803f80, 0")
    A(f"v_mov_b32 v250, s{T0}")
    A(f"v_mov_b32 v251, s{T0}")
    A("s_waitcnt vmcnt(10)")
    A("ds_write_b64 v14, v[250:251]")
    A("ds_write_b64 v14, v[250:251] offset:1024")
    A("s_waitcnt vmcnt(0) lgkmcnt(0)")
    minibar(0, 250)
    stamp(6)

    units = [(0, 0)]
    for j in range(1, 9): units += [(0, j), (1, j)]
    units += [(1, 9)]
    def kreads(j):
        k = KF + 6 * (j & 1)
        return [(f"ds_read_b128 v[{k}:{k+3}], v{VK1} offset:{512*j}", ('k', j)),
                (f"ds_read_b64 v[{k+4}:{k+5}], v{VK2} offset:{512*j}", ('k', j))]
    def vreads(j):
        f = VF + 8 * (j & 1)
        return [(f"ds_read_b64_tr_b16 v[{f+2*p}:{f+2*p+1}], v{VV} offset:{512*j + 128*p}", ('v', j)) for p in range(4)]
    def emit_rd(x):
        A(x[0]); lg.issue(x[1])
    def qk(u, part):
        qb, j = units[u]
        S = SB + 16 * (u & 1)
        k = KF + 6 * (j & 1); q = QF + 6 * qb
        if part == 0:
            rel = j - qb
            c = MF if rel == 0 else (MD if rel == 8 else None)
            lg.wait(('k', j))
            mfma32(S, k, q, c)
        else:
            A(f"v_mfma_f32_32x32x8_bf16 v[{S}:{S+15}], v[{k+4}:{k+5}], v[{q+4}:{q+5}], v[{S}:{S+15}]")
    def att_main(sub_m=None):
        lg.reset()
        for x in kreads(0) + kreads(1) + vreads(0): emit_rd(x)
        qk(0, 0); qk(0, 1)
        seen_o = set()
        for u, (qb, j) in enumerate(units):
            S = SB + 16 * (u & 1); P = PB + 8 * (u & 1); O = OA + 16 * qb
            f = VF + 8 * (j & 1)
            nxt = u + 1 < len(units)
            rds = []
            first_of_tile = (u == 0 or units[u-1][1] != j)
            last_of_tile = (not nxt) or units[u+1][1] != j
            if first_of_tile and j + 1 <= 9 and (u > 0 or True): rds += vreads(j + 1)
            if last_of_tile and j + 2 <= 9: rds += kreads(j + 2)
            def ex(r):
                if sub_m is not None: A(f"v_sub_f32 v{S+r}, v{S+r}, v{sub_m+qb}")
                A(f"v_exp_f32 v{S+r}, v{S+r}")
            if nxt: qk(u + 1, 0)
            for r in range(0, 4): ex(r)
            if nxt: qk(u + 1, 1)
            for r in range(4, 8):
                ex(r)
                if rds: emit_rd(rds.pop(0))
            for e in range(4): A(f"v_cvt_pk_bf16_f32 v{P+e}, v{S+2*e}, v{S+2*e+1}")
            ex(8); ex(9)
            lg.wait(('v', j))
            mfma32(O, f, P, O if qb in seen_o else None)
            seen_o.add(qb)
            for r in range(10, 16):
                ex(r)
                if rds: emit_rd(rds.pop(0))
            for e in range(4, 8): A(f"v_cvt_pk_bf16_f32 v{P+e}, v{S+2*e}, v{S+2*e+1}")
            assert not rds
            mfma32(O, f + 4, P + 4, O)
    att_main()
    stamp(7)
    A("s_nop 7")
    A(f"v_max3_f32 v250, abs(v{OA}), abs(v{OA+1}), abs(v{OA+2})")
    rest = [OA + r for r in range(3, 12)] + [OA + 16 + r for r in range(12)]
    while rest:
        a = rest.pop(0); b = rest.pop(0) if rest else a
        A(f"v_max3_f32 v250, v250, abs(v{a}), abs(v{b})")
    A(f"v_min_f32 v251, v{OA+12}, v{OA+28}")
    A(f"v_max_f32 v252, v{OA+12}, v{OA+28}")
    A(f"s_mov_b32 s{T0}, 0x30800000")
    A(f"s_mov_b32 s{T1}, 0x4e800000")
    A(f"s_mov_b32 s{T2}, 0x7f000000")
    A(f"v_cmp_le_f32 vcc, s{T0}, v251")
    A(f"v_cmp_ge_f32 s[{T4}:{T4+1}], s{T1}, v252")
    A(f"s_and_b64 vcc, vcc, s[{T4}:{T4+1}]")
    A(f"v_cmp_ge_f32 s[{T4}:{T4+1}], s{T2}, v250")
    A(f"s_and_b64 vcc, vcc, s[{T4}:{T4+1}]")
    A(f"v_cmp_o_f32 s[{T4}:{T4+1}], v{OA+12}, v{OA+28}")
    A(f"s_and_b64 vcc, vcc, s[{T4}:{T4+1}]")
    A("s_cmp_eq_u64 vcc, -1")
    if getattr(cfg, 'force_slow', False):
        A("s_branch .La_slow")
    else:
        A("s_cbranch_scc0 .La_slow")
    A.label(".La_norm")
    A(f"v_rcp_f32 v250, v{OA+12}")
    A(f"v_rcp_f32 v251, v{OA+28}")
    A(f"s_lshl_b32 s{T0}, s{S_I}, 1")
    A(f"v_add_u32 v12, s{T0}, v8")
    A("v_lshlrev_b32 v12, 15, v12")
    A("v_lshl_add_u32 v12, v7, 4, v12")
    A(f"s_add_u32 s{T0}, s15, {WS_OF}")
    A("v_lshlrev_b32 v13, 3, v0")
    A(f"s_lshr_b32 s{T1}, s15, 1")
    A(f"s_lshl_b32 s{T2}, s{S_I}, 14")
    A(f"s_add_u32 s{T1}, s{T1}, s{T2}")
    A(f"s_add_u32 s{T1}, s{T1}, {WS_OH}")
    for qb in range(2):
        O = OA + 16 * qb
        for r in range(12): A(f"v_mul_f32 v{O+r}, v{O+r}, v{250+qb}")
        for e in range(6): A(f"v_cvt_pk_bf16_f32 v{O+e}, v{O+2*e}, v{O+2*e+1}")
        A(f"v_permlane32_swap_b32 v{O}, v{O+2}")
        A(f"v_permlane32_swap_b32 v{O+1}, v{O+3}")
        A(f"buffer_store_dwordx4 v[{O}:{O+3}], v12, s[{R_WS}:{R_WS+3}], s{T0} offen offset:{512*qb} sc1")
    A(f"v_permlane32_swap_b32 v{OA+4}, v{OA+20}")
    A(f"v_permlane32_swap_b32 v{OA+5}, v{OA+21}")
    A(f"buffer_store_dwordx2 v[{OA+4}:{OA+5}], v13, s[{R_WS}:{R_WS+3}], s{T1} offen sc1")
    minibar(1, 250)
    A(f"s_lshl_b32 s{T0}, s{S_G}, 2")
    A(f"s_add_u32 s{T0}, s{T0}, s{S_WAVE}")
    A(f"s_lshl_b32 s{T0}, s{T0}, 5")
    A(f"s_add_u32 s{T0}, s{T0}, s{S_I}")
    A(f"s_lshl_b32 s{T0}, s{T0}, 7")
    A(f"s_add_u32 s{T0}, s{T0}, {WS_FO}")
    A("s_waitcnt vmcnt(0)")
    set_flag(T0, 250)
    stamp(8)

    srd(A, R_A, P_WO, 819200)
    srd(A, R_B, P_OUT, 5242880)
    S_CT, S_RT = 10, 11
    A(f"s_and_b32 s{S_CT}, s{S_I}, 7")
    A(f"s_lshr_b32 s{S_RT}, s{S_I}, 3")
    for n in range(5):
        A(f"v_add_u32 v1, {64*n}, v0")
        A("v_mul_u32_u24 v2, 6554, v1")
        A("v_lshrrev_b32 v2, 16, v2")
        A("v_mul_u32_u24 v3, 10, v2")
        A("v_sub_u32 v1, v1, v3")
        A("v_bfe_u32 v3, v2, 2, 2")
        A("v_and_b32 v4, 3, v2")
        A("v_lshrrev_b32 v5, 4, v2")
        A("v_lshl_add_u32 v4, v5, 2, v4")
        A("v_lshrrev_b32 v5, 1, v3")
        A("v_add_u32 v5, v5, v3")
        A("v_lshl_add_u32 v5, v5, 3, v4")
        A("v_mul_u32_u24 v5, 1280, v5")
        A(f"v_lshl_add_u32 v{16+n}, v1, 4, v5")
        A("v_mul_u32_u24 v5, 40, v3")
        A("v_add3_u32 v5, v5, v4, 16")
        A("v_mul_u32_u24 v5, 1280, v5")
        A(f"v_lshl_add_u32 v{21+n}, v1, 4, v5")
    A(f"s_mul_i32 s{T0}, s{S_CT}, 160")
    A(f"s_mul_i32 s{T1}, s{S_WAVE}, {160*1280}")
    A(f"s_add_u32 s{T0}, s{T0}, s{T1}")
    A(f"s_mul_i32 s{T2}, s{S_WAVE}, {4*5120}")
    A(f"s_mul_i32 s{T3}, s{S_WAVE}, 5120")
    for n in range(5):
        A(f"s_add_u32 m0, s{T3}, {16*5120 + n*1024}")
        A(f"buffer_load_dwordx4 v{21+n}, s[{R_A}:{R_A+3}], s{T0} offen lds")
    for a in range(4):
        for n in range(5):
            A(f"s_add_u32 m0, s{T2}, {a*5120 + n*1024}")
            A(f"buffer_load_dwordx4 v{16+n}, s[{R_A}:{R_A+3}], s{T0} offen lds")
        if a < 3: A(f"s_add_u32 s{T0}, s{T0}, {40*1280}")
    A(f"s_lshl_b32 s{T0}, s{S_G}, 2")
    A(f"s_add_u32 s{T0}, s{T0}, s{S_RT}")
    A(f"s_lshl_b32 s{T1}, s{T0}, 12")
    A(f"s_add_u32 s{T1}, s{T1}, {WS_FO}")
    A("v_lshlrev_b32 v2, 7, v7")
    A(f"v_add_u32 v2, s{T1}, v2")
    A(f"s_lshl_b32 s{T0}, s{T0}, 2")
    A(f"s_add_u32 s{T0}, s{T0}, s{S_WAVE}")
    A(f"s_lshl_b32 s12, s{T0}, 4")
    A("v_and_b32 v9, 15, v0")
    A("v_lshrrev_b32 v10, 4, v0")
    A("v_add_u32 v9, s12, v9")
    A("v_lshlrev_b32 v3, 15, v10")
    A("v_lshl_add_u32 v4, v9, 3, v3")
    A("v_lshl_add_u32 v3, v9, 4, v3")
    A("v_lshrrev_b32 v5, 2, v0")
    A("v_mul_u32_u24 v5, 160, v5")
    A("v_and_b32 v6, 3, v0")
    A("v_lshl_add_u32 v5, v6, 3, v5")
    A(f"v_add_u32 v6, {10*5120}, v5")
    A("s_waitcnt vmcnt(0)")
    minibar(2, 250)
    poll(2, 250)
    stamp(9)
    OF_, ACO, WB = 32, 112, 132
    vm = Cnt(A, "vmcnt", 63)
    A(f"s_mov_b32 s{T0}, {WS_OF}")
    for P in range(16):
        A(f"buffer_load_dwordx4 v[{OF_+4*P}:{OF_+4*P+3}], v3, s[{R_WS}:{R_WS+3}], s{T0} offen sc1")
        vm.issue(('o', P))
        if P < 15: A(f"s_add_u32 s{T0}, s{T0}, {4*PL}")
    A(f"s_mov_b32 s{T0}, {WS_OH}")
    for S in range(4):
        r = OF_ + 64 + 4 * S
        A(f"buffer_load_dwordx2 v[{r}:{r+1}], v4, s[{R_WS}:{R_WS+3}], s{T0} offen sc1")
        A(f"s_add_u32 s{T0}, s{T0}, 16384")
        A(f"buffer_load_dwordx2 v[{r+2}:{r+3}], v4, s[{R_WS}:{R_WS+3}], s{T0} offen sc1")
        if S < 3: A(f"s_add_u32 s{T0}, s{T0}, {7*16384}")
        vm.issue(('o', 16 + S)); vm.issue(('o', 16 + S))
    lg.reset()
    NB = 6
    def wrd(n):
        st, ct = n // 5, n % 5
        f = WB + 4 * (n % NB)
        va, off = (5, st * 5120) if st < 10 else (6, (st - 10) * 5120)
        A(f"ds_read_b64_tr_b16 v[{f}:{f+1}], v{va} offset:{off + ct*32}")
        A(f"ds_read_b64_tr_b16 v[{f+2}:{f+3}], v{va} offset:{off + ct*32 + 2560}")
        lg.issue(('w', n)); lg.issue(('w', n))
    for n in range(NB - 1): wrd(n)
    for n in range(100):
        st, ct = n // 5, n % 5
        if ct == 0: vm.wait(('o', st))
        lg.wait(('w', n))
        f = WB + 4 * (n % NB)
        a = ACO + 4 * ct
        cs = "0" if st == 0 else f"v[{a}:{a+3}]"
        A(f"v_mfma_f32_16x16x32_bf16 v[{a}:{a+3}], v[{f}:{f+3}], v[{OF_+4*st}:{OF_+4*st+3}], {cs}")
        if n + NB - 1 < 100: wrd(n + NB - 1)
    stamp(10)
    A("v_mul_u32_u24 v1, 2560, v9")
    A("v_lshl_add_u32 v2, v10, 3, v1")
    A("v_and_b32 v3, 1, v10")
    A("v_lshl_add_u32 v1, v3, 5, v1")
    A("v_lshrrev_b32 v3, 1, v10")
    A("v_lshl_add_u32 v1, v3, 4, v1")
    A(f"s_mul_i32 s{T0}, s{S_CT}, 160")
    E = WB
    for ct in range(5):
        a = ACO + 4 * ct
        A(f"v_cvt_pk_bf16_f32 v{E+2*ct}, v{a}, v{a+1}")
        A(f"v_cvt_pk_bf16_f32 v{E+2*ct+1}, v{a+2}, v{a+3}")
    for p in range(2):
        e = E + 4 * p
        A(f"v_permlane16_swap_b32 v{e}, v{e+2}")
        A(f"v_permlane16_swap_b32 v{e+1}, v{e+3}")
        A(f"buffer_store_dwordx4 v[{e}:{e+3}], v1, s[{R_B}:{R_B+3}], s{T0} offen offset:{64*p}")
    A(f"buffer_store_dwordx2 v[{E+8}:{E+9}], v2, s[{R_B}:{R_B+3}], s{T0} offen offset:128")
    finish(250)

    A.label(".La_slow")
    MM = 168
    A(f"v_mov_b32 v{MM}, v10")
    A(f"v_mov_b32 v{MM+1}, v10")
    A(f"s_lshl_b32 s{T0}, s{S_WAVE}, 1")
    A(f"s_cmp_eq_u32 s{S_G}, 0")
    A(f"s_cselect_b32 s{T0}, s{T0}, 8")
    lg.reset()
    for u, (qb, j) in enumerate(units):
        S = SB + 16 * (u & 1)
        skip = A.newlabel("skip")
        if j < 8:
            A(f"s_cmp_lt_u32 s{T0}, {8 - j}")
            A(f"s_cbranch_scc1 {skip}")
        for x in kreads(j): emit_rd(x)
        qk(u, 0); qk(u, 1)
        A("s_nop 15")
        for r in range(0, 16, 2):
            A(f"v_max3_f32 v{MM+qb}, v{MM+qb}, v{S+r}, v{S+r+1}")
        A.label(skip)
    A(f"v_mov_b32 v{MM+2}, v{MM}")
    A(f"v_mov_b32 v{MM+3}, v{MM+1}")
    A(f"v_permlane32_swap_b32 v{MM}, v{MM+2}")
    A(f"v_permlane32_swap_b32 v{MM+1}, v{MM+3}")
    A(f"v_max_f32 v{MM}, v{MM}, v{MM+2}")
    A(f"v_max_f32 v{MM+1}, v{MM+1}, v{MM+3}")
    def att_slow():
        lg.reset()
        seen = set()
        for u, (qb, j) in enumerate(units):
            S = SB + 16 * (u & 1); P = PB; O = OA + 16 * qb; f = VF + 8 * (j & 1)
            for x in kreads(j) + vreads(j): emit_rd(x)
            qk(u, 0); qk(u, 1)
            A("s_nop 15")
            for r in range(16):
                A(f"v_sub_f32 v{S+r}, v{S+r}, v{MM+qb}")
                A(f"v_min_f32 v{S+r}, 0, v{S+r}")
                A(f"v_exp_f32 v{S+r}, v{S+r}")
            for e in range(8): A(f"v_cvt_pk_bf16_f32 v{P+e}, v{S+2*e}, v{S+2*e+1}")
            lg.wait(('v', j))
            mfma32(O, f, P, O if qb in seen else None)
            seen.add(qb)
            mfma32(O, f + 4, P + 4, O)
    att_slow()
    A("s_nop 15")
    A("s_branch .La_norm")
    A.label(".Lexit")
    A("s_endpgm")
    return A

HDR = open('cdna_kernels/' + NAME + '.s.ref').read().split('; Override launch')[0]

def build(cfg, path):
    A = gen(cfg)
    body = fix_hazards([l for l in A.lines if l is not None])
    out = HDR
    out += f"; @launch grid=(256,1,1) block=(512,1,1) lds={LDS_SIZE}\n"
    out += '.amdgcn_target "amdgcn-amd-amdhsa--gfx950"\n.text\n'
    out += f".globl {NAME}_kernel\n.p2align 8\n.type {NAME}_kernel,@function\n{NAME}_kernel:\n"
    for l in body:
        out += (l if l.endswith(':') else '    ' + l) + '\n'
    out += f""".section .rodata,"a"
.p2align 6
.amdhsa_kernel {NAME}_kernel
  .amdhsa_next_free_vgpr 256
  .amdhsa_next_free_sgpr 102
  .amdhsa_accum_offset 256
  .amdhsa_group_segment_fixed_size 0
  .amdhsa_kernarg_size 96
  .amdhsa_user_sgpr_count 2
  .amdhsa_user_sgpr_kernarg_segment_ptr 1
  .amdhsa_system_sgpr_workgroup_id_x 1
  .amdhsa_float_denorm_mode_32 3
.end_amdhsa_kernel
"""
    open(path, 'w').write(out)

if __name__ == '__main__':
    cfg = Cfg()
    path = 'cdna_kernels/' + NAME + '.s'
    for a in sys.argv[1:]:
        if a.startswith('-o'):
            path = a[2:]
        else:
            k, val = a.split('=')
            setattr(cfg, k, eval(val))
    build(cfg, path)
```
